```python
import torch

def _softmax(x, axis=-1):
    return torch.softmax(x, dim=axis)
def _gelu(x):
    return torch.nn.functional.gelu(x, approximate="tanh")
def _silu(x):
    return torch.nn.functional.silu(x)
def _sigmoid(x):
    return torch.sigmoid(x)
def _layernorm(x, axis=-1, eps=1e-5):
    m = x.mean(dim=axis, keepdim=True)
    v = x.var(dim=axis, keepdim=True, unbiased=False)
    return (x - m) / torch.sqrt(v + eps)
def _scatter_add(tgt, idx, src, axis=0):
    return tgt.clone().index_add_(axis, idx, src)
def _segment_sum(src, seg, n):
    out = torch.zeros((n,) + src.shape[1:], dtype=src.dtype)
    return out.index_add_(0, seg, src)
def _pad(x, pw):
    flat = tuple(v for pair in reversed(pw) for v in pair)
    return torch.nn.functional.pad(x, flat)

kernel_name = 'recurrent_scan__mha_block_cached__mixer_token_mlp__decode'

def setup_inputs():

    _w = (lambda a: (lambda t: t.to(torch.bfloat16) if t.is_floating_point() else t)(torch.as_tensor(a)))
    def _A_setup():
        B, Sq, D = 8, 1, 512
        H, Sk, Dh = 32, 8192, 128
        return {
            "x": _w((lambda *s: torch.randn(*s, dtype=torch.bfloat16) * 0.4)(B, Sq, D)),
            "k_cache": _w((lambda *s: torch.randn(*s, dtype=torch.bfloat16) * 1.6)(B, H, Sk, Dh)),
            "v_cache": _w((lambda *s: torch.randn(*s, dtype=torch.bfloat16) * 1.6)(B, H, Sk, Dh)),
            "wq": _w((lambda *s: torch.randn(*s, dtype=torch.bfloat16) * 1.6)(D, H * Dh) * (D ** -0.5)),
            "wo": _w((lambda *s: torch.randn(*s, dtype=torch.bfloat16) * 1.6)(H * Dh, D) * ((H * Dh) ** -0.5)),
        }
    _A_in = _A_setup()

    def _B_setup():
        B, S, D, F = 8, 1, 512, 1792
        return {
            "x": _w((lambda *s: torch.randn(*s, dtype=torch.bfloat16) * 0.4)(B, S, D)),
            "w1": _w((lambda *s: torch.randn(*s, dtype=torch.bfloat16) * 1.6)(S, F) * (S ** -0.5)),
            "b1": _w((lambda *s: torch.randn(*s, dtype=torch.bfloat16) * 1.6)(F) * 0.02),
            "w2": _w((lambda *s: torch.randn(*s, dtype=torch.bfloat16) * 1.6)(F, S) * (F ** -0.5)),
            "b2": _w((lambda *s: torch.randn(*s, dtype=torch.bfloat16) * 1.6)(S) * 0.02),
        }
    _B_in = _B_setup()

    return {
        "A_x": _A_in["x"],
        "A_k_cache": _A_in["k_cache"],
        "A_v_cache": _A_in["v_cache"],
        "A_wq": _A_in["wq"],
        "A_wo": _A_in["wo"],
        "B_x": _B_in["x"],
        "B_w1": _B_in["w1"],
        "B_b1": _B_in["b1"],
        "B_w2": _B_in["w2"],
        "B_b2": _B_in["b2"],
    }

def reference(A_x, A_k_cache, A_v_cache, A_wq, A_wo, B_x, B_w1, B_b1, B_w2, B_b2):
    def _A_ref(x, k_cache, v_cache, wq, wo):
        B, Sq, D = x.shape
        H, Dh = 32, 128
        q = (lambda x, *d: x.permute(*d))((x @ wq).reshape(B, Sq, H, Dh), 0, 2, 1, 3)
        scores = torch.einsum("bhqd,bhkd->bhqk", q, k_cache) * (Dh ** -0.5)
        p = _softmax(scores, axis=-1)
        o = torch.einsum("bhqk,bhkd->bhqd", p, v_cache)
        return (lambda x, *d: x.permute(*d))(o, 0, 2, 1, 3).reshape(B, Sq, H * Dh) @ wo

    def _B_ref(x, w1, b1, w2, b2):
        B, S, D = x.shape
        h = _layernorm(x, axis=-1)
        u = torch.einsum("bsd,sf->bdf", h, w1) + b1
        u = _gelu(u)
        y = torch.einsum("bdf,fs->bds", u, w2) + b2
        return (lambda x, *d: x.permute(*d))(y, 0, 2, 1)

    x = A_x
    xn = _layernorm(x, axis=-1)
    s = _A_ref(xn, A_k_cache, A_v_cache, A_wq, A_wo)
    g = _silu(_B_ref(xn, B_w1, B_b1, B_w2, B_b2))
    return x + s * g
```

```python
import re

def _expand(op):
    op = op.strip()
    neg = op.lstrip('-')
    m = re.fullmatch(r'abs\((.*)\)', neg)
    if m: neg = m.group(1)
    neg = neg.strip('|')
    m = re.fullmatch(r'([vsa])(\d+)', neg)
    if m: return [(m.group(1), int(m.group(2)))]
    m = re.fullmatch(r'([vsa])\[(\d+):(\d+)\]', neg)
    if m: return [(m.group(1), i) for i in range(int(m.group(2)), int(m.group(3)) + 1)]
    if neg == 'vcc': return [('s', 106), ('s', 107)]
    if neg == 'vcc_lo': return [('s', 106)]
    if neg == 'vcc_hi': return [('s', 107)]
    if neg == 'exec': return [('s', 126), ('s', 127)]
    if neg == 'm0': return [('s', 124)]
    return []

def split_ops(s):
    out, depth, cur = [], 0, ''
    for ch in s:
        if ch in '[(': depth += 1
        if ch in '])': depth -= 1
        if ch == ',' and depth == 0:
            out.append(cur.strip()); cur = ''
        else:
            cur += ch
    if cur.strip(): out.append(cur.strip())
    return out

TRANS = ('v_exp_f32', 'v_log_f32', 'v_rcp_f32', 'v_rsq_f32', 'v_sqrt_f32', 'v_sin_f32', 'v_cos_f32', 'v_rcp_iflag_f32')

class Ins:
    def __init__(self, text):
        self.text = text
        t = text.split(';')[0].strip()
        self.label = None
        self.mn = None
        self.dst, self.src = [], []
        self.kind = 'other'
        self.dpp = False
        self.nopstates = 1
        if not t or t.startswith('.'):
            self.kind = 'dir'; self.nopstates = 0
            return
        if t.endswith(':'):
            self.label = t[:-1]; self.kind = 'label'; self.nopstates = 0
            return
        parts = t.split(None, 1)
        mn = parts[0]; self.mn = mn
        rest = parts[1] if len(parts) > 1 else ''
        ops = split_ops(rest)
        mods = ''
        if ops:
            last = ops[-1].split(None, 1)
            ops[-1] = last[0]
            if len(last) > 1: mods = last[1]
        self.ops, self.mods = ops, mods
        R = [_expand(o) for o in ops]
        base = re.sub(r'_(e32|e64|dpp|sdwa)$', '', mn)
        self.base = base
        if mn == 's_nop':
            self.kind = 'nop'; self.nopstates = int(ops[0], 0) + 1
        elif mn.startswith('v_mfma'):
            self.kind = 'mfma'
            self.dst = R[0]; self.srcA = R[1]; self.srcB = R[2]; self.srcC = R[3]
            self.src = R[1] + R[2] + R[3]
            self.passes = 8 if '32x32x16' in mn or '32x32x8' in mn else 4
            assert '16x16x32_bf16' in mn or '16x16x16_bf16' in mn or '32x32x16_bf16' in mn, mn
        elif mn.startswith('v_'):
            self.kind = 'valu'
            self.dpp = mn.endswith('_dpp') or 'quad_perm' in mods or 'row_' in mods
            if base.startswith('v_cmp'):
                self.dst = R[0]; self.src = sum(R[1:], [])
                if base.startswith('v_cmpx'): self.dst = self.dst + _expand('exec')
            elif base in ('v_permlane32_swap_b32', 'v_permlane16_swap_b32', 'v_swap_b32'):
                self.dst = R[0] + R[1]; self.src = R[0] + R[1]
            elif base in ('v_add_co_u32', 'v_sub_co_u32', 'v_addc_co_u32', 'v_subb_co_u32', 'v_subrev_co_u32'):
                self.dst = R[0] + R[1]; self.src = sum(R[2:], [])
            else:
                self.dst = R[0]; self.src = sum(R[1:], [])
                if base in ('v_fmac_f32', 'v_dot2c_f32_bf16', 'v_writelane_b32', 'v_pk_fmac_f16') or self.dpp:
                    self.src = self.src + R[0]
                if base == 'v_cndmask_b32' and len(ops) == 3:
                    self.src = self.src + _expand('vcc')
            self.trans = base in TRANS
            self.dot = base.startswith('v_dot')
            if self.dpp: self.dppsrc = R[1]
        elif mn.startswith('buffer_') or mn.startswith('global_') or mn.startswith('flat_'):
            self.kind = 'vmem'
            if 'load' in mn:
                if ' lds' in (' ' + mods) or 'load_lds' in mn:
                    self.src = sum(R, [])
                else:
                    self.dst = R[0]; self.src = sum(R[1:], [])
            elif 'atomic' in mn:
                if mn.startswith('buffer_'):
                    self.src = sum(R, [])
                    if 'sc0' in mods: self.dst = R[0]
                else:
                    if 'sc0' in mods:
                        self.dst = R[0]; self.src = sum(R[1:], [])
                    else:
                        self.src = sum(R, [])
            else:
                self.src = sum(R, [])
                self.wide_store = 'x3' in mn or 'x4' in mn
                if mn.startswith('buffer_'): self.stdata = R[0] if R else []
                else: self.stdata = R[1] if len(R) > 1 else []
        elif mn.startswith('ds_'):
            self.kind = 'ds'
            if 'read' in mn or 'bpermute' in mn or 'permute' in mn or 'swizzle' in mn or 'rtn' in mn:
                self.dst = R[0]; self.src = sum(R[1:], [])
            else:
                self.src = sum(R, [])
        elif mn.startswith('s_'):
            self.kind = 'salu'
            if mn.startswith('s_load') or mn.startswith('s_buffer_load') or mn in ('s_memtime', 's_memrealtime'):
                self.kind = 'smem'
                self.dst = R[0]; self.src = sum(R[1:], [])
            elif mn.startswith('s_cmp') or mn.startswith('s_cbranch') or mn in ('s_branch', 's_waitcnt', 's_barrier', 's_endpgm', 's_setprio', 's_sleep'):
                self.src = sum(R, [])
            else:
                self.dst = R[0] if R else []; self.src = sum(R[1:], [])
                if 'saveexec' in mn: self.dst = self.dst + _expand('exec')

def need_states(p, c):
    n = 0
    pd, cs, cd = set(p.dst), set(c.src), set(c.dst)
    vd = {r for r in pd if r[0] in 'va'}
    sd = {r for r in pd if r[0] == 's'}
    if p.kind == 'valu':
        if c.kind == 'valu':
            if c.dpp and vd & set(c.dppsrc): n = max(n, 2)
            if c.dpp and ('s', 126) in sd: n = max(n, 5)
            if p.trans and not c.trans and vd & (cs | cd): n = max(n, 1)
            if p.trans and c.trans and vd & cs: n = max(n, 1)
            if sd & cs: n = max(n, 2)
            if c.base in ('v_readlane_b32', 'v_writelane_b32') and sd & cs: n = max(n, 4)
            if c.base in ('v_readlane_b32', 'v_readfirstlane_b32') and vd & cs: n = max(n, 1)
            if c.base in ('v_readlane_b32', 'v_readfirstlane_b32', 'v_writelane_b32') and ('s', 126) in sd: n = max(n, 4)
            if c.base.startswith('v_permlane') and vd & cs: n = max(n, 2)
            if c.base.startswith('v_permlane') and ('s', 126) in sd: n = max(n, 4)
            if p.dot and vd & (cs | cd):
                if not (c.base == p.base): n = max(n, 3)
                else:
                    ab = set()
                    for o in c.ops[1:3]: ab |= set(_expand(o))
                    if vd & ab: n = max(n, 3)
            if ('sdwa' in p.mn or 'op_sel' in p.mods) and vd & (cs | cd): n = max(n, 1)
            if c.base == 'v_div_fmas_f32' and ('s', 106) in sd: n = max(n, 4)
        if c.kind == 'mfma':
            if vd & cs: n = max(n, 3 if p.dot else 2)
            if ('s', 126) in sd: n = max(n, 4)
        if c.kind == 'vmem' and sd & cs: n = max(n, 5)
        if c.kind in ('vmem', 'ds') and p.dot and vd & cs: n = max(n, 3)
        if c.kind in ('vmem', 'ds') and p.trans and vd & cs: n = max(n, 1)
        if c.kind == 'salu' and sd & cs and not c.mn.startswith('s_cbranch'): n = max(n, 1)
    if p.kind == 'mfma':
        P = p.passes
        if c.kind == 'mfma':
            if vd & set(c.srcC):
                if not (c.srcC == p.dst and c.passes == P): n = max(n, P + 2)
            if vd & (set(c.srcA) | set(c.srcB)): n = max(n, P + 4)
            if vd & cd and not (c.dst == p.dst and c.srcC == p.dst): n = max(n, P + 2)
        elif c.kind in ('valu', 'vmem', 'ds'):
            if vd & (cs | cd): n = max(n, P + 4)
            if c.kind == 'valu' and set(p.srcC) & cd: n = max(n, P - 1)
    if p.kind == 'vmem' and getattr(p, 'wide_store', False):
        if set(p.stdata) & cd: n = max(n, 2)
    if p.kind == 'salu':
        if ('s', 124) in sd and c.kind == 'vmem' and ('lds' in c.mods or 'load_lds' in c.mn): n = max(n, 1)
    return n

MAXLOOK = 24

def _required(prev, c):
    dist = 0
    extra = 0
    for p in reversed(prev):
        if p.kind in ('dir', 'label'): continue
        need = need_states(p, c)
        if need > dist: extra = max(extra, need - dist)
        dist += p.nopstates
        if dist >= MAXLOOK: break
    return extra

def hazard_pass(lines, verbose=False):
    ins = []
    nadded = 0
    for l in lines:
        c = Ins(l)
        if c.kind not in ('dir', 'label', 'nop'):
            prev = []
            for p in reversed(ins):
                if p.mn in ('s_branch', 's_endpgm', 's_setpc_b64'): break
                prev.append(p)
                if len(prev) > 80: break
            prev.reverse()
            e = _required(prev, c)
            while e > 0:
                k = min(e, 16)
                ins.append(Ins(f'  s_nop {k-1}'))
                nadded += 1
                e -= k
        ins.append(c)
    labels = {c.label: i for i, c in enumerate(ins) if c.kind == 'label'}
    problems = []
    for i, b in enumerate(ins):
        if b.mn and (b.mn.startswith('s_cbranch') or b.mn == 's_branch'):
            tgt = b.ops[0]
            if tgt not in labels: continue
            prev = []
            for p in reversed(ins[:i + 1]):
                if p is not b and p.mn in ('s_branch', 's_endpgm'): break
                prev.append(p)
                if len(prev) > 80: break
            prev.reverse()
            seq = list(prev)
            d = 0
            for c in ins[labels[tgt]:]:
                if c.kind in ('dir', 'label'): continue
                if c.kind != 'nop':
                    e = _required(seq, c)
                    if e > 0: problems.append((b.text, c.text, e))
                seq.append(c)
                d += c.nopstates
                if d >= MAXLOOK or c.mn in ('s_branch', 's_endpgm'): break
    if problems:
        for p in problems: print('HAZARD on branch path:', p)
        raise SystemExit('hazards on branch paths')
    if verbose: print('nops added:', nadded)
    return [c.text for c in ins]
```

```python
import sys, struct
sys.path.insert(0, 'gen')
from asmlib import hazard_pass

NAME = 'recurrent_scan__mha_block_cached__mixer_token_mlp__decode'
def f32(x): return '0x%08x' % struct.unpack('<I', struct.pack('<f', x))[0]
import math
LOG2E = math.log2(math.e)

def gen(kvpol=' nt', stamp=False):
    L = []
    A = lambda s: L.append('  ' + s)
    LB = lambda s: L.append(s + ':')
    QP, W1F, B1F, W2P, YP, OP, ML, FLAG = 0, 4096, 12288, 20480, 24576, 26624, 30720, 30848
    LDS_BYTES = 31744
    WS_G = 1 << 20
    WS_BYTES = (1 << 20) + 256 * 128
    sK, sV, sWQ, sWO, sX, sW1, sB1, sW2, sOUT, sWS = 32, 36, 40, 44, 48, 52, 56, 60, 64, 68
    sB, sH, sWV, sOFF, sCNT, sT0, sT1, sT2 = 72, 73, 74, 75, 76, 77, 78, 79
    sSCALE, sLOG2E, sMASK, sNLOG2E = 80, 81, 82, 83
    sR0 = 84
    sEX = 88
    sC0, sC1, sB2 = 90, 91, 92
    srd = lambda b: f's[{b}:{b+3}]'
    vTID, vLANE, vKO, vVO = 0, 1, 2, 3
    vM = 4
    vQ = 8
    vS = 24
    vO = 28
    vMAX, vNEG, vL = 32, 33, 34
    vT = 35
    vBT = 40
    vX8 = 48
    vXQ, vXH = 52, 53
    vW1, vB1, vW2 = 54, 56, 58
    vH, vXO, vCOL = 60, 61, 62
    vTMP = 63
    vW = 64
    vR = 128
    NS = 4
    vr = lambda a, n: f'v[{a}:{a+n-1}]'

    def mk_srd(s, lo, hi, nbytes):
        A(f's_mov_b32 s{s}, s{lo}')
        A(f's_and_b32 s{s+1}, s{hi}, 0xffff')
        A(f's_mov_b32 s{s+2}, {nbytes}')
        A(f's_mov_b32 s{s+3}, 0x00020000')

    def rbf(d, s):
        A(f'v_cvt_pk_bf16_f32 v{d}, v{s}, v{s}')
        A(f'v_and_b32 v{d}, s{sMASK}, v{d}')

    def wave_reduce(v, op):
        ins = f'v_{op}_f32'
        A(f'{ins}_dpp v{v}, v{v}, v{v} quad_perm:[1,0,3,2] row_mask:0xf bank_mask:0xf')
        A(f'{ins}_dpp v{v}, v{v}, v{v} quad_perm:[2,3,0,1] row_mask:0xf bank_mask:0xf')
        row_reduce4(v, op)

    def row_reduce4(v, op):
        ins = f'v_{op}_f32'
        A(f'{ins}_dpp v{v}, v{v}, v{v} row_ror:4 row_mask:0xf bank_mask:0xf')
        A(f'{ins}_dpp v{v}, v{v}, v{v} row_ror:8 row_mask:0xf bank_mask:0xf')
        rows_reduce(v, op)

    def rows_reduce(v, op):
        ins = f'v_{op}_f32'
        for i in range(4):
            A(f'v_readlane_b32 s{sR0+i}, v{v}, {16*i}')
        A(f'v_mov_b32 v{v}, s{sR0}')
        for i in range(1, 4):
            A(f'{ins} v{v}, s{sR0+i}, v{v}')

    def issue_k(s, pol=kvpol):
        r = vR + 32 * s
        for t in range(4):
            A(f'buffer_load_dwordx4 {vr(r+4*t,4)}, v{vKO}, {srd(sK)}, s{sOFF} offen offset:{t*1024}{pol}')
    def issue_v(s, pol=kvpol):
        r = vR + 32 * s + 16
        for t in range(4):
            A(f'buffer_load_dwordx4 {vr(r+4*t,4)}, v{vVO}, {srd(sV)}, s{sOFF} offen offset:{t*1024}{pol}')
        A(f's_add_u32 s{sOFF}, s{sOFF}, {8*4096}')

    def sel_gemv(acc, src2, data_base, n, first_zero, waits=None, bc=lambda t: t):
        for t in range(n):
            bt = vBT + 4 * (t & 1)
            for r in range(4):
                A(f'v_and_b32_dpp v{bt+r}, v{src2}, v{vM+r} row_newbcast:{bc(t)} row_mask:0xf bank_mask:0xf')
            if waits is not None and waits(t) is not None:
                A(f's_waitcnt vmcnt({waits(t)})')
            c = '0' if (first_zero and t == 0) else vr(acc, 4)
            A(f'v_mfma_f32_16x16x32_bf16 {vr(acc,4)}, {vr(data_base+4*t,4)}, {vr(bt,4)}, {c}')

    slow_blocks = []
    def tile(s, tag, wk, wv, reissue):
        r = vR + 32 * s
        t0, t1 = vT, vT + 1
        A(f's_waitcnt vmcnt({wk})')
        for t in range(4):
            c = '0' if t == 0 else vr(vS, 4)
            A(f'v_mfma_f32_16x16x32_bf16 {vr(vS,4)}, {vr(r+4*t,4)}, {vr(vQ+4*t,4)}, {c}')
        if reissue: issue_k(s)
        A(f'v_mov_b32_dpp v{t0}, v{vS} quad_perm:[0,0,0,0] row_mask:0xf bank_mask:0xf')
        for i in range(1, 4):
            A(f'v_add_f32_dpp v{t0}, v{vS+i}, v{t0} quad_perm:[{i},{i},{i},{i}] row_mask:0xf bank_mask:0xf')
        rbf(t0, t0)
        A(f'v_mul_f32 v{t0}, s{sSCALE}, v{t0}')
        rbf(t0, t0)
        A(f'v_cmp_gt_f32 vcc, v{t0}, v{vMAX}')
        A(f's_cbranch_vccnz L_slow_{tag}')
        LB(f'L_back_{tag}')
        A(f'v_fma_f32 v{t1}, v{t0}, s{sLOG2E}, v{vNEG}')
        A(f'v_exp_f32 v{t1}, v{t1}')
        A(f'v_add_f32 v{vL}, v{vL}, v{t1}')
        A(f'v_cvt_pk_bf16_f32 v{t1}, v{t1}, v{t1}')
        sel_gemv(vO, t1, r + 16, 4, False, waits=lambda t: wv if t == 0 else None, bc=lambda t: 4 * t)
        if reissue: issue_v(s)
        slow_blocks.append(tag)

    def slow(tag):
        t0, t2, t3 = vT, vT + 2, vT + 3
        LB(f'L_slow_{tag}')
        A('s_nop 1')
        A(f'v_max_f32_dpp v{t2}, v{t0}, v{t0} row_ror:4 row_mask:0xf bank_mask:0xf')
        A(f'v_max_f32_dpp v{t2}, v{t2}, v{t2} row_ror:8 row_mask:0xf bank_mask:0xf')
        for i in range(4):
            A(f'v_readlane_b32 s{sR0+i}, v{t2}, {16*i}')
        A(f'v_max_f32 v{t2}, s{sR0}, v{vMAX}')
        for i in range(1, 4):
            A(f'v_max_f32 v{t2}, s{sR0+i}, v{t2}')
        A(f'v_sub_f32 v{t3}, v{vMAX}, v{t2}')
        A(f'v_mul_f32 v{t3}, s{sLOG2E}, v{t3}')
        A(f'v_exp_f32 v{t3}, v{t3}')
        A(f'v_mov_b32 v{vMAX}, v{t2}')
        A(f'v_mul_f32 v{vNEG}, s{sNLOG2E}, v{t2}')
        A(f'v_mul_f32 v{vL}, v{vL}, v{t3}')
        for i in range(4):
            A(f'v_mul_f32 v{vO+i}, v{vO+i}, v{t3}')
        A(f's_branch L_back_{tag}')

    LB(f'{NAME}_kernel')
    A('s_cmp_ge_u32 s2, 256')
    A('s_cbranch_scc1 L_end')
    A('s_load_dwordx16 s[4:19], s[0:1], 0')
    A('s_load_dwordx8 s[20:27], s[0:1], 64')
    A('s_load_dwordx2 s[28:29], s[0:1], 96')
    A(f'v_lshrrev_b32 v{vTMP}, 6, v0')
    A(f'v_and_b32 v{vLANE}, 63, v0')
    A(f'v_readfirstlane_b32 s{sWV}, v{vTMP}')
    A(f's_lshr_b32 s{sB}, s2, 5')
    A(f's_and_b32 s{sH}, s2, 31')
    A(f'v_lshlrev_b32 v{vVO}, 4, v{vLANE}')
    g_, i_ = 8, 9
    A(f'v_lshrrev_b32 v{g_}, 4, v{vLANE}')
    A(f'v_and_b32 v{i_}, 15, v{vLANE}')
    A(f'v_lshlrev_b32 v{vKO}, 6, v{g_}')
    A(f'v_bfe_u32 v{vTMP}, v{vLANE}, 2, 2')
    A(f'v_lshl_add_u32 v{vKO}, v{vTMP}, 8, v{vKO}')
    A(f'v_and_b32 v{vTMP}, 3, v{vLANE}')
    A(f'v_lshl_add_u32 v{vKO}, v{vTMP}, 4, v{vKO}')
    oXQ, oXH, oWQ, oF = 10, 11, 12, 13
    A(f'v_lshl_add_u32 v{oXQ}, v{i_}, 2, v{g_}')
    A(f'v_lshlrev_b32 v{oXQ}, 1, v{oXQ}')
    A(f'v_lshlrev_b32 v{oXH}, 1, v{i_}')
    A(f'v_lshlrev_b32 v{oWQ}, 13, v{g_}')
    A(f'v_lshl_add_u32 v{oWQ}, v{i_}, 4, v{oWQ}')
    A(f'v_lshlrev_b32 v{oF}, 3, v0')
    A(f's_lshl_b32 s{sOFF}, s{sWV}, 12')
    A(f's_lshl_b32 s{sT0}, s2, 21')
    A(f's_lshr_b32 s{sT1}, s2, 11')
    A('s_waitcnt lgkmcnt(0)')
    mk_srd(sX, 4, 5, 8192)
    A(f's_lshl_b32 s{sT2}, s{sB}, 10')
    A(f'buffer_load_dwordx4 {vr(vX8,4)}, v{vVO}, {srd(sX)}, s{sT2} offen')
    A(f's_add_u32 s{sK}, s6, s{sT0}')
    A(f's_addc_u32 s{sK+1}, s7, s{sT1}')
    A(f's_and_b32 s{sK+1}, s{sK+1}, 0xffff')
    A(f's_mov_b32 s{sK+2}, {2<<20}')
    A(f's_mov_b32 s{sK+3}, 0x00020000')
    A(f's_add_u32 s{sV}, s8, s{sT0}')
    A(f's_addc_u32 s{sV+1}, s9, s{sT1}')
    A(f's_and_b32 s{sV+1}, s{sV+1}, 0xffff')
    A(f's_mov_b32 s{sV+2}, {2<<20}')
    A(f's_mov_b32 s{sV+3}, 0x00020000')
    A(f's_lshl_b32 s{sT0}, s{sWV}, 7')
    A(f's_add_u32 s{sT0}, s{sT0}, s{sT2}')
    A(f'buffer_load_ushort v{vXQ}, v{oXQ}, {srd(sX)}, s{sT0} offen')
    A(f's_lshl_b32 s{sT1}, s{sH}, 5')
    A(f's_add_u32 s{sT1}, s{sT1}, s{sT2}')
    A(f'buffer_load_ushort v{vXH}, v{oXH}, {srd(sX)}, s{sT1} offen')
    issue_k(0); issue_v(0)
    mk_srd(sW1, 16, 17, 3584)
    mk_srd(sB1, 18, 19, 3584)
    mk_srd(sW2, 20, 21, 3584)
    A(f'buffer_load_dwordx2 {vr(vW1,2)}, v{oF}, {srd(sW1)}, 0 offen')
    A(f'buffer_load_dwordx2 {vr(vB1,2)}, v{oF}, {srd(sB1)}, 0 offen')
    A(f'buffer_load_dwordx2 {vr(vW2,2)}, v{oF}, {srd(sW2)}, 0 offen')
    mk_srd(sWQ, 10, 11, 4 << 20)
    A(f's_lshl_b32 s{sT0}, s{sWV}, 19')
    A(f's_lshl_b32 s{sT1}, s{sH}, 8')
    A(f's_add_u32 s{sT0}, s{sT0}, s{sT1}')
    for t in range(16):
        A(f'buffer_load_dwordx4 {vr(vW+4*t,4)}, v{oWQ}, {srd(sWQ)}, s{sT0} offen')
        if t < 15: A(f's_add_u32 s{sT0}, s{sT0}, {4*8192}')
    for s in range(1, NS):
        issue_k(s); issue_v(s)
    A(f's_load_dword s{sB2}, s[22:23], 0')
    mk_srd(sWO, 12, 13, 4 << 20)
    mk_srd(sOUT, 24, 25, 8192)
    mk_srd(sWS, 28, 29, WS_BYTES)
    A(f's_mov_b32 s{sSCALE}, {f32(128 ** -0.5)}')
    A(f's_mov_b32 s{sLOG2E}, {f32(LOG2E)}')
    A(f's_mov_b32 s{sNLOG2E}, {f32(-LOG2E)}')
    A(f's_mov_b32 s{sMASK}, 0xffff0000')
    A(f'v_and_b32 v{vTMP}, 1, v{vLANE}')
    A(f'v_cmp_eq_u32 vcc, 1, v{vTMP}')
    A(f'v_mov_b32 v14, 0xffff')
    A(f'v_mov_b32 v15, s{sMASK}')
    A(f'v_cndmask_b32 v14, v14, v15, vcc')
    A(f'v_lshrrev_b32 v{vTMP}, 1, v{i_}')
    for r in range(4):
        A(f'v_cmp_eq_u32 vcc, {r}, v{vTMP}')
        A(f'v_cndmask_b32 v{vM+r}, 0, v14, vcc')
    A(f'v_mov_b32 v{vMAX}, 0xff800000')
    A(f'v_mov_b32 v{vNEG}, 0')
    A(f'v_mov_b32 v{vL}, 0')
    for i in range(4): A(f'v_mov_b32 v{vO+i}, 0')
    X = 16
    tA, tB, tC, tMEAN, tDEN, tRINV = 35, 36, 37, 38, 39, 40
    A('s_waitcnt vmcnt(51)')
    for i in range(4):
        A(f'v_lshlrev_b32 v{X+2*i}, 16, v{vX8+i}')
        A(f'v_and_b32 v{X+2*i+1}, s{sMASK}, v{vX8+i}')
    A(f'v_lshlrev_b32 v{vXQ}, 16, v{vXQ}')
    A(f'v_lshlrev_b32 v{vXH}, 16, v{vXH}')
    def ln_stats():
        A(f'v_add_f32 v{tA}, v{X}, v{X+1}')
        for i in range(2, 8): A(f'v_add_f32 v{tA}, v{tA}, v{X+i}')
        wave_reduce(tA, 'add')
        A(f'v_mul_f32 v{tA}, {f32(1/512)}, v{tA}')
        A(f'v_sub_f32 v{tB}, v{X}, v{tA}')
        A(f'v_mul_f32 v{tC}, v{tB}, v{tB}')
        for i in range(1, 8):
            A(f'v_sub_f32 v{tB}, v{X+i}, v{tA}')
            A(f'v_fmac_f32 v{tC}, v{tB}, v{tB}')
        wave_reduce(tC, 'add')
        A(f'v_mul_f32 v{tC}, {f32(1/512)}, v{tC}')
        rbf(tMEAN, tA)
        rbf(tC, tC)
        A(f'v_add_f32 v{tC}, {f32(1e-5)}, v{tC}')
        rbf(tC, tC)
        A(f'v_sqrt_f32 v{tC}, v{tC}')
        rbf(tDEN, tC)
        A(f'v_rcp_f32 v{tRINV}, v{tDEN}')
    def ln_apply(v):
        A(f'v_sub_f32 v{v}, v{v}, v{tMEAN}')
        rbf(v, v)
        A(f'v_mul_f32 v{tB}, v{v}, v{tRINV}')
        A(f'v_fma_f32 v{tC}, -v{tB}, v{tDEN}, v{v}')
        A(f'v_fma_f32 v{v}, v{tC}, v{tRINV}, v{tB}')
        rbf(v, v)
    ln_stats()
    for i in range(8): ln_apply(X + i)
    ln_apply(vXQ)
    ln_apply(vXH)
    A(f'v_cvt_pk_bf16_f32 v{vXQ}, v{vXQ}, v{vXQ}')
    ln_stats()
    ln_apply(vXH)
    A(f'v_mov_b32 v{vH}, v{vXH}')
    A('s_waitcnt vmcnt(40)')
    for (src, dst) in ((vW1, W1F), (vB1, B1F)):
        A(f'v_lshlrev_b32 v16, 16, v{src}')
        A(f'v_and_b32 v17, s{sMASK}, v{src}')
        A(f'v_lshlrev_b32 v18, 16, v{src+1}')
        A(f'v_and_b32 v19, s{sMASK}, v{src+1}')
        A(f'v_lshlrev_b32 v{vTMP}, 1, v{oF}')
        A(f'ds_write_b128 v{vTMP}, v[16:19] offset:{dst}')
    A(f'ds_write_b64 v{oF}, {vr(vW2,2)} offset:{W2P}')
    sel_gemv(vS, vXQ, vW, 16, True, waits=lambda t: 24 + 15 - t)
    A(f'v_lshlrev_b32 v16, 7, v{g_}')
    A(f'v_lshl_add_u32 v16, v{i_}, 2, v16')
    A(f's_lshl_b32 s{sT0}, s{sWV}, 9')
    A(f'v_add_u32 v16, s{sT0}, v16')
    A(f's_mov_b32 exec_lo, 0x00ff00ff')
    A(f's_mov_b32 exec_hi, 0x00ff00ff')
    A(f'ds_write2_b32 v16, v{vS}, v{vS+1} offset0:{QP//4} offset1:{QP//4+8}')
    A(f'ds_write2_b32 v16, v{vS+2}, v{vS+3} offset0:{QP//4+16} offset1:{QP//4+24}')
    A('s_mov_b64 exec, -1')
    A(f'v_bfe_u32 v17, v{vLANE}, 2, 2')
    A(f'v_lshlrev_b32 v18, 10, v17')
    A(f'v_lshl_add_u32 v18, v{g_}, 7, v18')
    A(f'v_and_b32 v{vTMP}, 3, v{vLANE}')
    A(f'v_lshl_add_u32 v18, v{vTMP}, 5, v18')
    A('s_waitcnt lgkmcnt(0)')
    A('s_barrier')
    q0 = vW
    A(f'ds_read_b128 {vr(q0,4)}, v18 offset:{QP}')
    A(f'ds_read_b128 {vr(q0+4,4)}, v18 offset:{QP+16}')
    A(f'ds_read_b128 {vr(q0+8,4)}, v18 offset:{QP+512}')
    A(f'ds_read_b128 {vr(q0+12,4)}, v18 offset:{QP+528}')
    A(f'v_mov_b32 v{vTMP}, v17')
    A('s_waitcnt lgkmcnt(0)')
    for i in range(8): A(f'v_add_f32 v{q0+i}, v{q0+i}, v{q0+8+i}')
    for i in range(8): A(f'v_add_f32_dpp v{q0+i}, v{q0+i}, v{q0+i} row_ror:4 row_mask:0xf bank_mask:0xf')
    for i in range(8): A(f'v_add_f32_dpp v{q0+i}, v{q0+i}, v{q0+i} row_ror:8 row_mask:0xf bank_mask:0xf')
    for i in range(4): A(f'v_cvt_pk_bf16_f32 v{q0+8+i}, v{q0+2*i}, v{q0+2*i+1}')
    for t in range(4):
        A(f'v_cmp_eq_u32 vcc, {t}, v{vTMP}')
        for i in range(4): A(f'v_cndmask_b32 v{vQ+4*t+i}, 0, v{q0+8+i}, vcc')
    for s in range(NS): tile(s, f'a{s}', 28, 28, True)
    G = vW
    aW1, aB1, aW2, acc = G, G + 1, G + 2, G + 3
    w1, b1, w2 = G + 4, G + 8, G + 12
    u, e, pk = G + 16, G + 20, G + 24
    KB = math.sqrt(2 / math.pi)
    A(f's_mov_b32 s{sC0}, {f32(-2 * KB * LOG2E)}')
    A(f's_mov_b32 s{sC1}, {f32(-2 * KB * LOG2E * 0.044715)}')
    A(f'v_lshrrev_b32 v{aW1}, 4, v0')
    A(f'v_mul_u32_u24 v{aW2}, 112, v{aW1}')
    A(f'v_mul_u32_u24 v{aW1}, 224, v{aW1}')
    A(f'v_mov_b32 v{acc}, 0')
    A(f'v_mov_b32 v{G+26}, s{sC0}')
    A(f's_mov_b32 s{sCNT}, 14')
    LB('L_gelu')
    A(f'ds_read_b128 {vr(w1,4)}, v{aW1} offset:{W1F}')
    A(f'ds_read_b128 {vr(b1,4)}, v{aW1} offset:{B1F}')
    A(f'ds_read_b64 {vr(w2,2)}, v{aW2} offset:{W2P}')
    A(f'v_add_u32 v{aW1}, 16, v{aW1}')
    A(f'v_add_u32 v{aW2}, 8, v{aW2}')
    A('s_waitcnt lgkmcnt(2)')
    for i in range(4): A(f'v_mul_f32 v{u+i}, v{vH}, v{w1+i}')
    def rbf4(x):
        for i in range(2): A(f'v_cvt_pk_bf16_f32 v{pk+i}, v{x+2*i}, v{x+2*i+1}')
        for i in range(2):
            A(f'v_lshlrev_b32 v{x+2*i}, 16, v{pk+i}')
            A(f'v_and_b32 v{x+2*i+1}, s{sMASK}, v{pk+i}')
    rbf4(u)
    A('s_waitcnt lgkmcnt(1)')
    for i in range(4): A(f'v_add_f32 v{u+i}, v{u+i}, v{b1+i}')
    rbf4(u)
    for i in range(4): A(f'v_mul_f32 v{e+i}, v{u+i}, v{u+i}')
    for i in range(4): A(f'v_fma_f32 v{e+i}, v{e+i}, s{sC1}, v{G+26}')
    for i in range(4): A(f'v_mul_f32 v{e+i}, v{e+i}, v{u+i}')
    for i in range(4): A(f'v_exp_f32 v{e+i}, v{e+i}')
    for i in range(4): A(f'v_add_f32 v{e+i}, 1.0, v{e+i}')
    for i in range(4): A(f'v_rcp_f32 v{e+i}, v{e+i}')
    for i in range(4): A(f'v_mul_f32 v{u+i}, v{u+i}, v{e+i}')
    rbf4(u)
    A('s_waitcnt lgkmcnt(0)')
    A(f'v_lshlrev_b32 v{e}, 16, v{w2}')
    A(f'v_and_b32 v{e+1}, s{sMASK}, v{w2}')
    A(f'v_lshlrev_b32 v{e+2}, 16, v{w2+1}')
    A(f'v_and_b32 v{e+3}, s{sMASK}, v{w2+1}')
    for i in range(4): A(f'v_fmac_f32 v{acc}, v{u+i}, v{e+i}')
    A(f's_sub_u32 s{sCNT}, s{sCNT}, 1')
    A(f's_cmp_lg_u32 s{sCNT}, 0')
    A('s_cbranch_scc1 L_gelu')
    A(f'v_lshlrev_b32 v{G+1}, 2, v0')
    A(f'ds_write_b32 v{G+1}, v{acc} offset:{YP}')
    A('s_waitcnt lgkmcnt(0)')
    A('s_barrier')
    A(f's_cmp_lg_u32 s{sWV}, 0')
    A('s_cbranch_scc1 L_gdone')
    A(f'v_lshlrev_b32 v{G+1}, 2, v{vLANE}')
    for i in range(4):
        A(f'ds_read2st64_b32 {vr(G+4+2*i,2)}, v{G+1} offset0:{YP//256+2*i} offset1:{YP//256+2*i+1}')
    A('s_waitcnt lgkmcnt(0)')
    for i in range(1, 8): A(f'v_add_f32 v{G+4}, v{G+4}, v{G+4+i}')
    A(f'v_mov_b32 v{G+5}, v{G+4}')
    A(f'v_permlane32_swap_b32 v{G+5}, v{G+4}')
    A(f'v_add_f32 v{G+4}, v{G+4}, v{G+5}')
    A(f'v_mov_b32 v{G+5}, v{G+4}')
    A(f'v_permlane16_swap_b32 v{G+5}, v{G+4}')
    A(f'v_add_f32 v{G+4}, v{G+4}, v{G+5}')
    rbf(G + 4, G + 4)
    A(f's_lshl_b32 s{sT0}, s{sB2}, 16')
    A(f'v_add_f32 v{G+4}, s{sT0}, v{G+4}')
    rbf(G + 4, G + 4)
    A(f'v_mul_f32 v{G+5}, s{sNLOG2E}, v{G+4}')
    A(f'v_exp_f32 v{G+5}, v{G+5}')
    A(f'v_add_f32 v{G+5}, 1.0, v{G+5}')
    A(f'v_rcp_f32 v{G+5}, v{G+5}')
    A(f'v_mul_f32 v{G+4}, v{G+4}, v{G+5}')
    rbf(G + 4, G + 4)
    A(f's_lshl_b32 s{sT0}, s2, 7')
    A(f's_add_u32 s{sT0}, s{sT0}, {WS_G}')
    A('s_mov_b64 exec, 0xffff')
    A(f'buffer_store_dword v{G+4}, v{G+1}, {srd(sWS)}, s{sT0} offen sc1')
    A('s_mov_b64 exec, -1')
    LB('L_gdone')
    A(f'v_lshrrev_b32 v{vT}, 4, v{vLANE}')
    A(f'v_and_b32 v{vT+1}, 15, v{vLANE}')
    A(f'v_lshlrev_b32 v{vTMP}, 10, v{vT}')
    A(f'v_lshl_add_u32 v{vTMP}, v{vT+1}, 4, v{vTMP}')
    A(f'v_lshrrev_b32 v{vT+2}, 3, v{vT+1}')
    A(f'v_lshlrev_b32 v{vCOL}, 5, v{vT+2}')
    A(f'v_lshl_add_u32 v{vCOL}, v{vT}, 3, v{vCOL}')
    A(f'v_and_b32 v{vT+2}, 7, v{vLANE}')
    A(f'v_add_u32 v{vCOL}, v{vCOL}, v{vT+2}')
    A(f's_lshl_b32 s{sT0}, s{sWV}, 6')
    A(f'v_add_u32 v{vCOL}, s{sT0}, v{vCOL}')
    A(f'v_lshlrev_b32 v{vT+2}, 1, v{vCOL}')
    A(f's_lshl_b32 s{sT2}, s{sB}, 10')
    A(f'buffer_load_ushort v{vXO}, v{vT+2}, {srd(sX)}, s{sT2} offen')
    A(f's_lshl_b32 s{sT0}, s{sH}, 17')
    A(f's_lshr_b32 s{sT1}, s{sWV}, 2')
    A(f's_lshl_b32 s{sT1}, s{sT1}, 16')
    A(f's_add_u32 s{sT0}, s{sT0}, s{sT1}')
    A(f's_and_b32 s{sT1}, s{sWV}, 3')
    A(f's_lshl_b32 s{sT1}, s{sT1}, 8')
    A(f's_add_u32 s{sT0}, s{sT0}, s{sT1}')
    for t in range(16):
        A(f'buffer_load_dwordx4 {vr(vW+4*t,4)}, v{vTMP}, {srd(sWO)}, s{sT0} offen')
        if t < 15: A(f's_add_u32 s{sT0}, s{sT0}, 4096')
    A(f's_mov_b32 s{sCNT}, 14')
    LB('L_loop')
    for s in range(NS): tile(s, f'b{s}', 28, 28, True)
    A(f's_sub_u32 s{sCNT}, s{sCNT}, 1')
    A(f's_cmp_lg_u32 s{sCNT}, 0')
    A('s_cbranch_scc1 L_loop')
    for s in range(NS): tile(s, f'c{s}', 28 - 8 * s, 24 - 8 * s, False)
    row_reduce4(vL, 'add')
    E = vR
    A(f'v_lshrrev_b32 v{E}, 4, v{vLANE}')
    A(f'v_and_b32 v{E+1}, 15, v{vLANE}')
    A(f'v_lshlrev_b32 v{E+2}, 7, v{E}')
    A(f'v_lshl_add_u32 v{E+2}, v{E+1}, 2, v{E+2}')
    A(f's_lshl_b32 s{sT0}, s{sWV}, 9')
    A(f'v_add_u32 v{E+2}, s{sT0}, v{E+2}')
    A(f's_lshl_b32 s{sT0}, s{sWV}, 3')
    A(f'v_mov_b32 v{E+3}, s{sT0}')
    A(f'v_mov_b32 v{E+4}, v{vMAX}')
    A(f'v_mov_b32 v{E+5}, v{vL}')
    A(f's_mov_b32 exec_lo, 0x00ff00ff')
    A(f's_mov_b32 exec_hi, 0x00ff00ff')
    A(f'v_add_u32 v{E+6}, {OP}, v{E+2}')
    A(f'ds_write2_b32 v{E+6}, v{vO}, v{vO+1} offset0:0 offset1:8')
    A(f'ds_write2_b32 v{E+6}, v{vO+2}, v{vO+3} offset0:16 offset1:24')
    A('s_mov_b64 exec, 1')
    A(f'ds_write_b64 v{E+3}, {vr(E+4,2)} offset:{ML}')
    A('s_mov_b64 exec, -1')
    A(f'v_lshl_add_u32 v{E+7}, v{E+1}, 2, v{E}')
    A(f's_lshr_b32 s{sT1}, s{sWV}, 2')
    A(f's_lshl_b32 s{sT1}, s{sT1}, 6')
    A(f'v_add_u32 v{E+7}, s{sT1}, v{E+7}')
    A(f'v_lshlrev_b32 v{E+7}, 2, v{E+7}')
    A(f'v_mov_b32 v{E+8}, 0')
    A('s_waitcnt lgkmcnt(0)')
    A('s_barrier')
    ml = E + 16
    op = E + 32
    for i in range(4): A(f'ds_read_b128 {vr(ml+4*i,4)}, v{E+8} offset:{ML+16*i}')
    for i in range(4): A(f'ds_read2st64_b32 {vr(op+2*i,2)}, v{E+7} offset0:{OP//256+4*i} offset1:{OP//256+4*i+2}')
    A('s_waitcnt lgkmcnt(4)')
    MX = E + 9
    A(f'v_max3_f32 v{MX}, v{ml}, v{ml+2}, v{ml+4}')
    A(f'v_max3_f32 v{MX}, v{MX}, v{ml+6}, v{ml+8}')
    A(f'v_max3_f32 v{MX}, v{MX}, v{ml+10}, v{ml+12}')
    A(f'v_max_f32 v{MX}, v{MX}, v{ml+14}')
    for i in range(8): A(f'v_sub_f32 v{ml+2*i}, v{ml+2*i}, v{MX}')
    for i in range(8): A(f'v_mul_f32 v{ml+2*i}, s{sLOG2E}, v{ml+2*i}')
    for i in range(8): A(f'v_exp_f32 v{ml+2*i}, v{ml+2*i}')
    LS, OS = E + 10, E + 11
    A(f'v_mul_f32 v{LS}, v{ml}, v{ml+1}')
    for i in range(1, 8): A(f'v_fmac_f32 v{LS}, v{ml+2*i}, v{ml+2*i+1}')
    A(f'v_rcp_f32 v{LS}, v{LS}')
    A('s_waitcnt lgkmcnt(0)')
    A(f'v_mul_f32 v{OS}, v{ml}, v{op}')
    for i in range(1, 8): A(f'v_fmac_f32 v{OS}, v{ml+2*i}, v{op+i}')
    A(f'v_mul_f32 v{OS}, v{OS}, v{LS}')
    A(f'v_cvt_pk_bf16_f32 v{OS}, v{OS}, v{OS}')
    sel_gemv(vS, OS, vW, 16, True)
    A(f'v_lshlrev_b32 v{E+12}, 7, v{E}')
    A(f'v_lshl_add_u32 v{E+12}, v{E+1}, 4, v{E+12}')
    A(f's_lshl_b32 s{sT0}, s2, 12')
    A(f's_lshr_b32 s{sT1}, s{sWV}, 2')
    A(f's_lshl_b32 s{sT1}, s{sT1}, 11')
    A(f's_add_u32 s{sT0}, s{sT0}, s{sT1}')
    A(f's_and_b32 s{sT1}, s{sWV}, 3')
    A(f's_lshl_b32 s{sT1}, s{sT1}, 9')
    A(f's_add_u32 s{sT0}, s{sT0}, s{sT1}')
    A(f's_mov_b32 exec_lo, 0x00ff00ff')
    A(f's_mov_b32 exec_hi, 0x00ff00ff')
    A(f'buffer_store_dwordx4 {vr(vS,4)}, v{E+12}, {srd(sWS)}, s{sT0} offen sc1')
    A('s_mov_b64 exec, -1')
    A(f'v_lshlrev_b32 v{E+13}, 11, v{E}')
    A(f'v_lshl_add_u32 v{E+13}, v{E+1}, 4, v{E+13}')
    A(f'v_lshrrev_b32 v{E+14}, 4, v{vCOL}')
    A(f'v_lshlrev_b32 v{E+14}, 7, v{E+14}')
    A(f'v_and_b32 v{E+15}, 15, v{vCOL}')
    A(f'v_lshl_add_u32 v{E+14}, v{E+15}, 2, v{E+14}')
    A(f'v_lshlrev_b32 v{E+15}, 1, v{vCOL}')
    A('s_waitcnt vmcnt(0)')
    A('s_barrier')
    A(f's_cmp_lg_u32 s{sWV}, 0')
    A('s_cbranch_scc1 L_noatom')
    A(f's_lshl_b32 s{sT0}, s{sB}, 5')
    A(f'v_mov_b32 v{E+3}, s{sT0}')
    A(f'v_mov_b32 v{E+4}, 1')
    A('s_mov_b64 exec, 1')
    A(f'global_atomic_add v{E+5}, v{E+3}, v{E+4}, s[26:27] sc0')
    A('s_waitcnt vmcnt(0)')
    A(f'ds_write_b32 v{E+8}, v{E+5} offset:{FLAG}')
    A('s_mov_b64 exec, -1')
    A('s_waitcnt lgkmcnt(0)')
    LB('L_noatom')
    A('s_barrier')
    A(f'ds_read_b32 v{E+5}, v{E+8} offset:{FLAG}')
    A('s_waitcnt lgkmcnt(0)')
    A(f'v_readfirstlane_b32 s{sT0}, v{E+5}')
    A(f's_cmp_lg_u32 s{sT0}, 31')
    A('s_cbranch_scc1 L_end')
    P = vW
    A(f's_lshl_b32 s{sT0}, s{sB}, 17')
    A(f's_lshl_b32 s{sT1}, s{sWV}, 8')
    A(f's_add_u32 s{sT0}, s{sT0}, s{sT1}')
    for k in range(16):
        A(f'buffer_load_dwordx4 {vr(P+4*k,4)}, v{E+13}, {srd(sWS)}, s{sT0} offen sc1')
        if k < 15: A(f's_add_u32 s{sT0}, s{sT0}, 8192')
    A(f's_lshl_b32 s{sT1}, s{sB}, 12')
    A(f's_add_u32 s{sT1}, s{sT1}, {WS_G}')
    A(f'buffer_load_dword v{E+5}, v{E+14}, {srd(sWS)}, s{sT1} offen sc1')
    for k in range(1, 16):
        A(f's_waitcnt vmcnt({16-k})')
        for i in range(4): A(f'v_add_f32 v{P+i}, v{P+i}, v{P+4*k+i}')
    A(f'v_permlane32_swap_b32 v{P}, v{P+2}')
    A(f'v_permlane32_swap_b32 v{P+1}, v{P+3}')
    A(f'v_add_f32 v{P}, v{P}, v{P+2}')
    A(f'v_add_f32 v{P+1}, v{P+1}, v{P+3}')
    A(f'v_permlane16_swap_b32 v{P}, v{P+1}')
    A(f'v_add_f32 v{P}, v{P}, v{P+1}')
    rbf(P, P)
    A('s_waitcnt vmcnt(0)')
    A(f'v_mul_f32 v{P}, v{P}, v{E+5}')
    rbf(P, P)
    A(f'v_lshlrev_b32 v{vXO}, 16, v{vXO}')
    A(f'v_add_f32 v{P}, v{P}, v{vXO}')
    A(f'v_cvt_pk_bf16_f32 v{P}, v{P}, v{P}')
    A(f's_lshl_b32 s{sT2}, s{sB}, 10')
    A(f'buffer_store_short v{P}, v{E+15}, {srd(sOUT)}, s{sT2} offen')
    LB('L_end')
    A('s_endpgm')
    for tag in slow_blocks: slow(tag)

    body = hazard_pass(L, verbose=True)
    hdr = open(f'cdna_kernels/{NAME}.s.ref').read().split('\n')
    head = [l for l in hdr if l.startswith(';') and '@launch' not in l and not l.startswith('    ')]
    out = head + [f'; @launch grid=(256,1,1) block=(512,1,1) lds={LDS_BYTES}',
        '.amdgcn_target "amdgcn-amd-amdhsa--gfx950"', '.text', f'.globl {NAME}_kernel', '.p2align 8', f'.type {NAME}_kernel,@function']
    out += body
    out += ['.section .rodata,"a"', '.p2align 6', f'.amdhsa_kernel {NAME}_kernel',
        '  .amdhsa_next_free_vgpr 256', '  .amdhsa_next_free_sgpr 96', '  .amdhsa_accum_offset 256',
        '  .amdhsa_group_segment_fixed_size 0', '  .amdhsa_kernarg_size 104', '  .amdhsa_user_sgpr_count 2',
        '  .amdhsa_user_sgpr_kernarg_segment_ptr 1', '  .amdhsa_system_sgpr_workgroup_id_x 1', '.end_amdhsa_kernel', '']
    return '\n'.join(out)

if __name__ == '__main__':
    out = sys.argv[1] if len(sys.argv) > 1 else f'cdna_kernels/{NAME}.s'
    open(out, 'w').write(gen())
```
